```python
import torch

def _softmax(x, axis=-1):
    return torch.softmax(x, dim=axis)
def _gelu(x):
    return torch.nn.functional.gelu(x, approximate="tanh")
def _silu(x):
    return torch.nn.functional.silu(x)
def _sigmoid(x):
    return torch.sigmoid(x)
def _layernorm(x, axis=-1, eps=1e-5):
    m = x.mean(dim=axis, keepdim=True)
    v = x.var(dim=axis, keepdim=True, unbiased=False)
    return (x - m) / torch.sqrt(v + eps)
def _scatter_add(tgt, idx, src, axis=0):
    return tgt.clone().index_add_(axis, idx, src)
def _segment_sum(src, seg, n):
    out = torch.zeros((n,) + src.shape[1:], dtype=src.dtype)
    return out.index_add_(0, seg, src)
def _pad(x, pw):
    flat = tuple(v for pair in reversed(pw) for v in pair)
    return torch.nn.functional.pad(x, flat)

kernel_name = 'recurrent_scan__mha_block__glu_gated_glu__prompt'

def setup_inputs():

    _w = (lambda a: (lambda t: t.to(torch.bfloat16) if t.is_floating_point() else t)(torch.as_tensor(a)))
    def _A_setup():
        B, S, D, H = 1, 2048, 448, 16
        return {
            "x": _w((lambda *s: torch.randn(*s, dtype=torch.bfloat16) * 0.05)(B, S, D)),
            "wqkv": _w((lambda *s: torch.randn(*s, dtype=torch.bfloat16) * 0.05)(D, 3 * D)),
            "wo": _w((lambda *s: torch.randn(*s, dtype=torch.bfloat16) * 0.05)(D, D)),
        }
    _A_in = _A_setup()

    def _B_setup():
        B, S, D, F = 1, 2048, 448, 1792
        return {
            "x": _w((lambda *s: torch.randn(*s, dtype=torch.bfloat16) * 0.05)(B, S, D)),
            "w_gate": _w((lambda *s: torch.randn(*s, dtype=torch.bfloat16) * 0.05)(D, F)),
            "w_up": _w((lambda *s: torch.randn(*s, dtype=torch.bfloat16) * 0.05)(D, F)),
            "w_down": _w((lambda *s: torch.randn(*s, dtype=torch.bfloat16) * 0.05)(F, D)),
        }
    _B_in = _B_setup()

    return {
        "A_x": _A_in["x"],
        "A_wqkv": _A_in["wqkv"],
        "A_wo": _A_in["wo"],
        "B_x": _B_in["x"],
        "B_w_gate": _B_in["w_gate"],
        "B_w_up": _B_in["w_up"],
        "B_w_down": _B_in["w_down"],
    }

def reference(A_x, A_wqkv, A_wo, B_x, B_w_gate, B_w_up, B_w_down):
    def _A_ref(x, wqkv, wo):
        B, S, D = x.shape
        H = 16
        Dh = D // H
        qkv = (lambda x, *d: x.permute(*d))((x @ wqkv).reshape(B, S, 3, H, Dh), 2, 0, 3, 1, 4)
        q, k, v = qkv[0], qkv[1], qkv[2]
        scores = torch.einsum("bhqd,bhkd->bhqk", q, k) * (Dh ** -0.5)
        p = _softmax(scores, axis=-1)
        o = torch.einsum("bhqk,bhkd->bhqd", p, v)
        return (lambda x, *d: x.permute(*d))(o, 0, 2, 1, 3).reshape(B, S, D) @ wo

    def _B_ref(x, w_gate, w_up, w_down):
        g = torch.einsum("bsd,df->bsf", x, w_gate)
        u = torch.einsum("bsd,df->bsf", x, w_up)
        h = _sigmoid(g) * u
        return torch.einsum("bsf,fd->bsd", h, w_down)

    x = A_x
    xn = _layernorm(x, axis=-1)
    s = _A_ref(xn, A_wqkv, A_wo)
    g = _silu(_B_ref(xn, B_w_gate, B_w_up, B_w_down))
    return x + s * g
```

```python
import re

TRANS = ("v_exp_f32", "v_log_f32", "v_rcp_f32", "v_rsq_f32", "v_sqrt_f32", "v_sin_f32", "v_cos_f32")
_reg_re = re.compile(r"\b([vsa])(\d+)\b|\b([vsa])\[(\d+):(\d+)\]|\b(vcc|exec|m0|scc)\b")


def regs_of(op):
    out = []
    for m in _reg_re.finditer(op):
        if m.group(1):
            out.append((m.group(1), int(m.group(2))))
        elif m.group(3):
            out += [(m.group(3), i) for i in range(int(m.group(4)), int(m.group(5)) + 1)]
        else:
            n = m.group(6)
            if n in ("vcc", "exec"):
                out += [(n, 0), (n, 1)]
            else:
                out.append((n, 0))
    return out


def split_ops(s):
    ops, depth, cur = [], 0, ""
    for ch in s:
        if ch == "[":
            depth += 1
        if ch == "]":
            depth -= 1
        if ch == "," and depth == 0:
            ops.append(cur.strip())
            cur = ""
        else:
            cur += ch
    if cur.strip():
        ops.append(cur.strip())
    return ops


class Ins:
    __slots__ = ("text", "mn", "ops", "kind", "dst", "src", "pre", "label", "target", "srcA", "srcB", "srcC", "data")

    def __init__(self, text):
        self.text = text
        self.pre = 0
        self.label = None
        self.target = None
        self.dst, self.src, self.data = [], [], []
        self.srcA = self.srcB = self.srcC = []
        t = text.split(";")[0].strip()
        if t.endswith(":"):
            self.kind, self.label, self.mn, self.ops = "label", t[:-1], "", []
            return
        if t.startswith(".") or not t:
            self.kind, self.mn, self.ops = "dir", "", []
            return
        parts = t.split(None, 1)
        self.mn = mn = parts[0]
        rest = parts[1] if len(parts) > 1 else ""
        ops = split_ops(rest)
        self.ops = ops
        R = [regs_of(o.split(" ")[0]) if i < len(ops) - 1 or True else [] for i, o in enumerate(ops)]
        if mn.startswith("v_mfma") or mn.startswith("v_smfmac"):
            self.kind = "mfma"
            self.dst, self.srcA, self.srcB, self.srcC = R[0], R[1], R[2], R[3]
            self.src = R[1] + R[2] + R[3]
        elif mn.startswith("v_"):
            self.kind = "valu"
            if mn.startswith("v_cmp"):
                self.dst = R[0]
                self.src = sum(R[1:], [])
            elif mn.startswith("v_permlane32_swap") or mn.startswith("v_permlane16_swap") or mn.startswith("v_swap"):
                self.dst = R[0] + R[1]
                self.src = R[0] + R[1]
            elif mn in ("v_add_co_u32", "v_addc_co_u32", "v_sub_co_u32"):
                self.dst = R[0] + R[1]
                self.src = sum(R[2:], [])
            else:
                self.dst = R[0]
                self.src = sum(R[1:], [])
                if mn.startswith("v_fmac") or mn.startswith("v_dot2c") or mn.startswith("v_mac"):
                    self.src = self.src + R[0]
                if mn.startswith("v_cndmask") and len(ops) == 3:
                    self.src = self.src + [("vcc", 0), ("vcc", 1)]
        elif mn.startswith("buffer_") or mn.startswith("global_"):
            self.kind = "vmem"
            lds = " lds" in (" " + rest)
            if "store" in mn or "atomic" in mn:
                if mn.startswith("buffer_"):
                    self.data = R[0]
                    self.src = sum(R, [])
                    if "atomic" in mn and "sc0" in rest:
                        self.dst = R[0]
                else:
                    self.src = sum(R, [])
                    self.data = R[1] if "atomic" not in mn or "sc0" not in rest else R[2]
                    if "atomic" in mn and "sc0" in rest:
                        self.dst = R[0]
                        self.src = sum(R[1:], [])
            elif lds:
                self.src = sum(R, []) + [("m0", 0)]
            else:
                self.dst = R[0]
                self.src = sum(R[1:], [])
        elif mn.startswith("ds_"):
            self.kind = "ds"
            if "read" in mn or "permute" in mn or "swizzle" in mn or "_rtn" in mn:
                self.dst = R[0]
                self.src = sum(R[1:], [])
            else:
                self.src = sum(R, [])
        elif mn.startswith("s_"):
            self.kind = "salu"
            if mn.startswith("s_cbranch") or mn == "s_branch":
                self.target = ops[0]
            elif mn in ("s_nop", "s_waitcnt", "s_barrier", "s_endpgm", "s_setprio", "s_sleep"):
                pass
            elif mn.startswith("s_cmp") or mn.startswith("s_bitcmp"):
                self.src = sum(R, [])
            else:
                self.dst = R[0] if R else []
                self.src = sum(R[1:], [])
        else:
            raise ValueError("unknown instruction: " + text)

    def states(self):
        if self.kind in ("label", "dir"):
            return 0
        if self.mn == "s_nop":
            return int(self.ops[0], 0) + 1
        return 1


def passes(mn):
    if "32x32x16" in mn or "32x32x8" in mn:
        return 8
    if "16x16x32" in mn or "16x16x16" in mn or "16x16x64" in mn:
        return 4
    raise ValueError(mn)


MAXAGE = 24


def need_pad(ins, st):
    need = 0

    def req(key, n):
        nonlocal need
        if key in st:
            age = st[key][0]
            if n - age > need:
                need = n - age

    k = ins.kind
    if k == "mfma":
        for r in ins.src:
            req(("valuw", r), 2)
            req(("dotw", r), 3)
        for r in ins.srcA + ins.srcB:
            if ("mfw", r) in st:
                p = st[("mfw", r)][1][0]
                req(("mfw", r), {4: 8, 8: 12}[p])
        if ins.srcC:
            for r in ins.srcC:
                if ("mfw", r) in st:
                    p, d, mn = st[("mfw", r)][1]
                    if d == tuple(ins.srcC) and p == passes(ins.mn):
                        continue
                    req(("mfw", r), {4: 6, 8: 10}[p])
        for r in ins.dst:
            if ("mfw", r) in st and r not in ins.srcC:
                p, d, mn = st[("mfw", r)][1]
                req(("mfw", r), {4: 8, 8: 12}[p])
    if k in ("valu", "vmem", "ds"):
        for r in ins.src + ins.dst:
            if ("mfw", r) in st:
                p = st[("mfw", r)][1][0]
                req(("mfw", r), {4: 8, 8: 12}[p])
    if k in ("vmem", "ds"):
        for r in ins.dst:
            if ("mfc", r) in st:
                req(("mfc", r), {4: 3, 8: 7}[st[("mfc", r)][1]])
        for r in ins.dst:
            req(("stdata", r), 1)
        for r in ins.src:
            req(("dotw", r), 3)
            req(("transw", r), 1)
    if k == "valu":
        for r in ins.dst:
            if ("mfc", r) in st:
                req(("mfc", r), {4: 3, 8: 7}[st[("mfc", r)][1]])
            req(("stdata", r), 2)
        if ins.mn not in TRANS:
            for r in ins.src:
                req(("transw", r), 1)
        isdot = ins.mn.startswith("v_dot")
        for r in ins.src + ins.dst:
            if ("dotw", r) in st:
                if isdot and st[("dotw", r)][1] == ins.mn and r in ins.dst:
                    continue
                req(("dotw", r), 3)
        if ins.mn.startswith("v_permlane") or "dpp" in ins.text or "quad_perm" in ins.text or "row_" in ins.text:
            for r in ins.src:
                req(("valuw", r), 2)
        if ins.mn.startswith("v_readfirstlane") or ins.mn.startswith("v_readlane"):
            for r in ins.src:
                req(("valuw", r), 1)
            if ins.mn.startswith("v_readlane"):
                for r in ins.src:
                    req(("valus", r), 4)
        for r in ins.src:
            req(("valus", r), 2)
    if k == "vmem":
        for r in ins.src:
            req(("valus", r), 5)
            if r[0] == "m0":
                req(("m0w", r), 1)
    if k == "ds" and "addtid" in ins.mn:
        req(("m0w", ("m0", 0)), 1)
    return need


def advance(st, n):
    dead = []
    for key, (age, info) in st.items():
        if age + n > MAXAGE:
            dead.append(key)
        else:
            st[key] = (age + n, info)
    for d in dead:
        del st[d]


def record(ins, st):
    k = ins.kind
    if k == "mfma":
        p = passes(ins.mn)
        for r in ins.dst:
            st[("mfw", r)] = (0, (p, tuple(ins.dst), ins.mn))
        for r in ins.srcC:
            st[("mfc", r)] = (0, p)
    elif k == "valu":
        for r in ins.dst:
            if r[0] in ("v", "a"):
                st.pop(("mfw", r), None)
                if ins.mn.startswith("v_dot"):
                    st[("dotw", r)] = (0, ins.mn)
                else:
                    st[("valuw", r)] = (0, None)
                if ins.mn in TRANS:
                    st[("transw", r)] = (0, None)
                else:
                    st.pop(("transw", r), None)
            else:
                st[("valus", r)] = (0, None)
    elif k == "vmem":
        if len(ins.data) >= 3:
            for r in ins.data:
                st[("stdata", r)] = (0, None)
    elif k == "salu":
        for r in ins.dst:
            if r[0] == "m0":
                st[("m0w", r)] = (0, None)
            st.pop(("valus", r), None)


def merge(a, b):
    for key, (age, info) in b.items():
        if key not in a or a[key][0] > age:
            a[key] = (age, info)


def pad(instrs):
    saved = {}
    for it in range(4):
        changed = False
        st = {}
        for ins in instrs:
            if ins.kind == "label":
                if ins.label in saved:
                    merge(st, saved[ins.label])
                continue
            if ins.kind == "dir":
                continue
            advance(st, ins.pre)
            n = need_pad(ins, st)
            if n > 0:
                ins.pre += n
                advance(st, n)
                changed = True
            advance(st, ins.states())
            record(ins, st)
            if ins.target:
                s2 = dict(st)
                old = saved.get(ins.target)
                if old is None:
                    saved[ins.target] = s2
                    changed = True
                else:
                    before = dict(old)
                    merge(old, s2)
                    if old != before:
                        changed = True
                if ins.mn == "s_branch":
                    st = {}
            if ins.mn == "s_endpgm":
                st = {}
        if not changed:
            break
    return instrs


class Asm:
    def __init__(self):
        self.ins = []
        self.vm = 0
        self.lg = 0
        self.uid = 0

    def __call__(self, text):
        for line in text.strip("\n").split("\n"):
            line = line.strip()
            if not line or line.startswith(";"):
                continue
            i = Ins(line)
            self.ins.append(i)
            if i.kind == "vmem":
                self.vm += 1
            elif i.kind == "ds":
                self.lg += 1
        return self

    def label(self, base):
        self.uid += 1
        return f"L_{base}_{self.uid}"

    def vm_tag(self):
        return self.vm

    def lg_tag(self):
        return self.lg

    def wait(self, vm=None, lg=None):
        parts = []
        if vm is not None:
            n = self.vm - vm
            assert n >= 0
            if n <= 63:
                parts.append(f"vmcnt({n})")
            else:
                parts.append("vmcnt(63)")
        if lg is not None:
            n = self.lg - lg
            assert n >= 0
            parts.append(f"lgkmcnt({min(n, 15)})")
        if parts:
            self("s_waitcnt " + " ".join(parts))

    def text(self):
        pad(self.ins)
        out = []
        for i in self.ins:
            n = i.pre
            while n > 0:
                c = min(n, 16)
                out.append(f"  s_nop {c - 1}")
                n -= c
            if i.kind == "label":
                out.append(i.text)
            else:
                out.append("  " + i.text)
        return "\n".join(out) + "\n"
```

```python
from asmlib import Asm
from layout import *

SLOT = 16384
TST = 147456
STAT = 155648
CSA = 159744
RSTD = 161792
LDS1 = 163840
LOG2E = 1.4426950408889634

vL16, vX0, vX1, vWA, vWB, vWC, vT = 1, 2, 3, 4, 5, 6, 7
vS0, vS1, vQ0, vQ1, vT0, vT1, vT2, vT3 = 8, 9, 10, 11, 12, 13, 14, 15
X = 16
ACC0, ACC1 = 128, 160
RING = 192
CS = 224
SEL = 232
AUGX = 236
AUGW = 240
WA = 244
XA = 248
vC1, vSD, vRS, vMisc = 252, 253, 254, 255
sW, sTb, sHg, sKap, sTB, sG = 3, 4, 5, 6, 7, 8
sX, sA0, sA1, sB0, sB1, sC, sT, sWS = 36, 40, 44, 48, 52, 56, 60, 64
sW1k, sXo, sAo, sB0o, sB1o, sCo, sBstep = 68, 69, 70, 71, 72, 73, 74
sHA, sPB0, sPB1, sPC, sTo = 75, 76, 77, 78, 79
sTm = 80
sMask, sQs = 82, 83
sHi = 84
sV1 = 86
sV0 = 88
sB8, sC8 = 90, 91


def f32(x):
    import struct
    return "0x%08x" % struct.unpack("<I", struct.pack("<f", x))[0]


def q(r, n=4):
    return f"v[{r}:{r + n - 1}]"


def srd(a, s, ptr, nbytes):
    a(f"s_mov_b32 s{s}, s{ptr}")
    a(f"s_mov_b32 s{s + 1}, s{ptr + 1}")
    a(f"s_mov_b32 s{s + 2}, {nbytes}")
    a(f"s_mov_b32 s{s + 3}, 0x00020000")


def k1(name, st_flags=""):
    a = Asm()
    a(f"{name}:")
    a("s_cmp_ge_u32 s2, 256")
    a("s_cbranch_scc1 L_k1_exit")
    a("s_load_dwordx16 s[16:31], s[0:1], 0")
    a("s_load_dwordx2 s[32:33], s[0:1], 72")
    a(f"""
    v_lshrrev_b32 v1, 6, v0
    v_and_b32 v0, 63, v0
    s_and_b32 s9, s2, 7
    v_readfirstlane_b32 s{sW}, v1
    s_lshr_b32 s10, s2, 3
    s_and_b32 s11, s9, 1
    s_lshl_b32 s11, s11, 3
    s_and_b32 s12, s10, 7
    s_add_u32 s{sTB}, s11, s12
    s_lshr_b32 s11, s9, 1
    s_lshl_b32 s11, s11, 2
    s_lshr_b32 s12, s10, 3
    s_add_u32 s{sG}, s11, s12
    s_and_b32 s{sTb}, s{sW}, 3
    s_lshr_b32 s{sHg}, s{sW}, 2
    s_lshl_b32 s11, s{sHg}, 1
    s_xor_b32 s{sKap}, s{sTb}, s11
    s_lshl_b32 s{sW1k}, s{sW}, 10
    """)
    a(f"""
    v_lshrrev_b32 v8, 3, v0
    v_mul_u32_u24 v8, 896, v8
    v_and_b32 v9, 7, v0
    v_lshrrev_b32 v10, 4, v0
    v_xor_b32 v9, v9, v10
    v_lshl_add_u32 v{vX0}, v9, 4, v8
    v_xor_b32 v9, 4, v9
    v_lshl_add_u32 v{vX1}, v9, 4, v8
    v_add_u32 v{vX1}, {8 * 896}, v{vX1}
    s_lshl_b32 s11, s{sTB}, 7
    s_lshl_b32 s12, s{sW}, 4
    s_add_u32 s11, s11, s12
    s_mul_i32 s{sXo}, s11, 896
    """)
    a(f"""
    v_bfe_u32 v8, v0, 2, 3
    v_and_b32 v9, 3, v0
    v_lshlrev_b32 v9, 4, v9
    v_lshrrev_b32 v10, 5, v0
    v_mul_u32_u24 v11, 3584, v8
    v_lshl_add_u32 v12, v10, 6, v9
    v_add_u32 v{vWA}, v11, v12
    v_mul_u32_u24 v11, 2688, v8
    v_mul_u32_u24 v12, 48, v10
    v_add3_u32 v{vWC}, v11, v12, v9
    v_mov_b32 v{vWB}, v{vWA}
    s_lshl_b32 s9, s{sW}, 3
    s_mul_i32 s10, s9, 3584
    s_mul_i32 s11, s9, 2688
    s_lshl_b32 s12, s{sG}, 8
    s_add_u32 s{sAo}, s10, s12
    s_add_u32 s{sB0o}, s{sAo}, 128
    s_mov_b32 s{sB1o}, s{sB0o}
    s_mov_b32 s{sBstep}, {64 * 3584}
    s_mul_i32 s12, s{sG}, 112
    s_add_u32 s{sCo}, s11, s12
    s_add_u32 s{sCo}, s{sCo}, 1792
    s_lshl_b32 s13, s{sTB}, 2
    s_add_u32 s13, s13, s{sTb}
    """)
    a(f"""
    s_mul_i32 s14, s13, {112 * 1024}
    s_lshl_b32 s15, s{sG}, 2
    s_add_u32 s15, s15, s{sHg}
    s_lshl_b32 s15, s15, 11
    s_add_u32 s{sHA}, s14, s15
    s_add_u32 s{sHA}, s{sHA}, {HF}
    s_add_u32 s{sPB0}, s{sHA}, 4096
    s_mov_b32 s{sPB1}, 0
    s_lshl_b32 s15, s{sG}, 1
    s_add_u32 s15, s15, s{sHg}
    s_lshl_b32 s15, s15, 18
    s_lshl_b32 s34, s13, 12
    s_add_u32 s{sPC}, s15, s34
    s_add_u32 s{sPC}, s{sPC}, {KV + 2048}
    """)
    a("s_waitcnt lgkmcnt(0)")
    srd(a, sX, 16, 2048 * 896)
    srd(a, sA0, 24, 448 * 3584)
    srd(a, sA1, 26, 448 * 3584)
    srd(a, sB0, 24, 448 * 3584)
    srd(a, sB1, 26, 448 * 3584)
    srd(a, sC, 18, 448 * 2688)
    srd(a, sWS, 32, WS_END)
    a(f"""
    s_cmp_lt_u32 s{sG}, 8
    s_cbranch_scc1 L_k1_cfg_done
    s_sub_u32 s{sCo}, s{sCo}, {1792 + 8 * 112 - 896}
    s_sub_u32 s{sPC}, s{sPC}, {(16 << 18) + 2048}
    s_cmp_lt_u32 s{sG}, 12
    s_cbranch_scc1 L_k1_cfg_done
    s_sub_u32 s12, s{sG}, 12
    s_lshl_b32 s15, s12, 7
    s_add_u32 s{sAo}, s10, s15
    s_add_u32 s{sAo}, s{sAo}, 3072
    s_lshl_b32 s15, s12, 1
    s_add_u32 s15, s15, s{sHg}
    s_lshl_b32 s15, s15, 11
    s_add_u32 s{sHA}, s14, s15
    s_add_u32 s{sHA}, s{sHA}, {HF + 48 * 2048}
    s_mul_i32 s15, s12, 224
    s_add_u32 s{sB0o}, s11, s15
    s_add_u32 s{sB1o}, s{sB0o}, 112
    s_mov_b32 s{sBstep}, {64 * 2688}
    v_mov_b32 v{vWB}, v{vWC}
    s_lshl_b32 s15, s12, 2
    s_add_u32 s15, s15, s{sHg}
    s_lshl_b32 s15, s15, 17
    s_lshl_b32 s34, s13, 11
    s_add_u32 s{sPB0}, s15, s34
    s_add_u32 s{sPB0}, s{sPB0}, {QF}
    s_add_u32 s{sPB1}, s{sPB0}, {2 << 17}
    """)
    srd(a, sB0, 18, 448 * 2688)
    srd(a, sB1, 18, 448 * 2688)
    a("L_k1_cfg_done:")

    stage_tag = {}

    def dma(slot_off, voff, srdr, soff):
        a(f"s_add_u32 m0, s{sW1k}, {slot_off}")
        a(f"buffer_load_dwordx4 v{voff}, s[{srdr}:{srdr + 3}], s{soff} offen lds")

    def issue(i):
        base = (i % 9) * SLOT
        if i < 14 and i % 2 == 0:
            a(f"s_lshl_b32 s9, s{sW1k}, 1")
            a(f"s_add_u32 m0, s9, {base}")
            a(f"buffer_load_dwordx4 v{vX0}, s[{sX}:{sX + 3}], s{sXo} offen lds")
            a(f"s_add_u32 m0, s9, {base + 1024}")
            a(f"buffer_load_dwordx4 v{vX1}, s[{sX}:{sX + 3}], s{sXo} offen lds")
            a(f"s_add_u32 s{sXo}, s{sXo}, 128")
        elif i < 14:
            dma(base, vWA, sA0, sAo)
            dma(base + 8192, vWA, sA1, sAo)
            a(f"s_add_u32 s{sAo}, s{sAo}, {64 * 3584}")
        elif i < 21:
            dma(base, vWB, sB0, sB0o)
            dma(base + 8192, vWB, sB1, sB1o)
            a(f"s_add_u32 s{sB0o}, s{sB0o}, s{sBstep}")
            a(f"s_add_u32 s{sB1o}, s{sB1o}, s{sBstep}")
        elif i == 21:
            a(f"s_add_u32 s9, s{sCo}, {384 * 2688}")
            dma(base, vWC, sC, 9)
        else:
            dma(base, vWC, sC, sCo)
            a(f"s_add_u32 s{sCo}, s{sCo}, {64 * 2688}")
            dma(base + 8192, vWC, sC, sCo)
            a(f"s_add_u32 s{sCo}, s{sCo}, {64 * 2688}")
        stage_tag[i] = a.vm_tag()

    for i in range(4):
        issue(i)
    a(f"""
    s_lshl_b32 s9, s2, 3
    s_add_u32 s9, s9, s{sW}
    s_min_u32 s9, s9, 2015
    s_mov_b64 s[{sTm}:{sTm + 1}], 0
    s_cmp_lt_u32 s9, 1568
    s_cbranch_scc0 L_k1_two
    s_mul_i32 s10, s9, 4682
    s_lshr_b32 s10, s10, 16
    s_mul_i32 s11, s10, 14
    s_sub_u32 s11, s9, s11
    s_mul_i32 s12, s11, 112
    s_add_u32 s12, s12, s10
    s_lshl_b32 s12, s12, 10
    s_add_u32 s{sTo}, s12, {WDF}
    s_mul_i32 s10, s10, {16 * 896}
    """)
    srd(a, sT, 28, 1792 * 896)
    a(f"""
    s_branch L_k1_tdone
    L_k1_two:
    s_sub_u32 s9, s9, 1568
    s_mul_i32 s10, s9, 4682
    s_lshr_b32 s10, s10, 16
    s_mul_i32 s11, s10, 14
    s_sub_u32 s11, s9, s11
    s_lshl_b32 s12, s11, 5
    s_add_u32 s12, s12, s10
    s_lshl_b32 s12, s12, 10
    s_add_u32 s{sTo}, s12, {WOF}
    s_lshr_b32 s12, s10, 1
    s_mul_i32 s12, s12, 28
    s_and_b32 s10, s10, 1
    s_cselect_b32 s{sTm + 1}, -1, 0
    s_lshl_b32 s10, s10, 4
    s_add_u32 s10, s10, s12
    s_mul_i32 s10, s10, 896
    """)
    srd(a, sT, 20, 448 * 896)
    a(f"""
    L_k1_tdone:
    s_lshl_b32 s11, s11, 6
    s_add_u32 s10, s10, s11
    v_lshrrev_b32 v8, 2, v0
    v_mul_u32_u24 v8, 896, v8
    v_and_b32 v9, 3, v0
    v_lshl_add_u32 v{vT}, v9, 4, v8
    """)
    for i in range(4, 9):
        issue(i)
    a(f"s_add_u32 m0, s{sW1k}, {TST}")
    a(f"buffer_load_dwordx4 v{vT}, s[{sT}:{sT + 3}], s10 offen lds")
    tdma_tag = a.vm_tag()
    a(f"""
    v_bfe_u32 v8, v0, 2, 2
    v_lshlrev_b32 v8, 6, v8
    v_bfe_u32 v9, v0, 4, 1
    v_lshl_add_u32 v8, v9, 5, v8
    v_and_b32 v9, 3, v0
    v_lshl_add_u32 v8, v9, 3, v8
    v_lshrrev_b32 v10, 5, v0
    v_lshl_add_u32 v{vT}, v10, 8, v8
    v_add_u32 v{vT}, s{sW1k}, v{vT}
    v_add_u32 v{vT}, {TST}, v{vT}
    v_lshl_add_u32 v8, v10, 10, v8
    s_lshl_b32 s9, s{sHg}, 9
    s_lshl_b32 s10, s{sKap}, 11
    s_add_u32 s9, s9, s10
    v_add_u32 v{WA}, s9, v8
    v_xor_b32 v{WA + 1}, 2048, v{WA}
    v_xor_b32 v{WA + 2}, 4096, v{WA}
    v_xor_b32 v{WA + 3}, 6144, v{WA}
    v_and_b32 v8, 31, v0
    v_bfe_u32 v9, v0, 1, 3
    v_xor_b32 v9, v9, v10
    s_lshl_b32 s9, s{sKap}, 1
    v_xor_b32 v9, s9, v9
    v_lshlrev_b32 v9, 4, v9
    v_lshl_add_u32 v9, v8, 7, v9
    s_lshl_b32 s9, s{sTb}, 12
    v_add_u32 v{XA}, s9, v9
    v_xor_b32 v{XA + 1}, 32, v{XA}
    v_xor_b32 v{XA + 2}, 64, v{XA}
    v_xor_b32 v{XA + 3}, 96, v{XA}
    v_lshlrev_b32 v{vL16}, 4, v0
    """)
    a(f"""
    v_lshrrev_b32 v9, 4, v0
    v_lshrrev_b32 v11, 2, v0
    v_xor_b32 v9, v9, v11
    v_and_b32 v9, 1, v9
    v_add_u32 v9, -1, v9
    v_and_b32 v{SEL}, 0x3f803f80, v9
    v_mov_b32 v{SEL + 1}, v{SEL}
    v_mov_b32 v{SEL + 2}, v{SEL}
    v_mov_b32 v{SEL + 3}, v{SEL}
    v_mov_b32 v{AUGX + 1}, 0
    v_mov_b32 v{AUGX + 2}, 0
    v_mov_b32 v{AUGX + 3}, 0
    v_mov_b32 v{AUGW + 1}, 0
    v_mov_b32 v{AUGW + 2}, 0
    v_mov_b32 v{AUGW + 3}, 0
    v_mov_b32 v{vS0}, 0
    v_mov_b32 v{vS1}, 0
    v_mov_b32 v{vQ0}, 0
    v_mov_b32 v{vQ1}, 0
    s_mov_b32 s{sMask}, 0xffff0000
    s_mov_b32 s{sQs}, {f32(28 ** -0.5 * LOG2E)}
    s_mov_b32 s{sHi}, 0
    s_mov_b32 s{sHi + 1}, -1
    s_mov_b32 s{sV1}, 0x10000000
    s_mov_b32 s{sV1 + 1}, 0x10000000
    s_mov_b32 s{sV0}, 0xe0000000
    s_mov_b32 s{sV0 + 1}, 0xe0000000
    """)
    a(f"""
    v_and_b32 v12, 31, v0
    s_lshl_b32 s9, s{sHg}, 10
    s_lshl_b32 s10, s{sTb}, 2
    s_add_u32 s9, s9, s10
    v_lshlrev_b32 v12, 4, v12
    v_add_u32 v{vMisc}, s9, v12
    v_add_u32 v{vMisc}, {STAT}, v{vMisc}
    """)

    units = []
    for c in range(7):
        for p in range(4):
            units.append(dict(stage=2 * c + 1, xstage=2 * c, fr=[(0, p, 4 * c + p, ACC0), (1, p, 4 * c + p, ACC0 + 16)], g=c, ph="A", first=(c == 0 and p == 0)))
    for c in range(7):
        for p in range(4):
            units.append(dict(stage=14 + c, fr=[(0, p, 4 * c + p, ACC1), (1, p, 4 * c + p, ACC1 + 16)], g=7 + c, ph="B", first=(c == 0 and p == 0)))
    units.append(dict(stage=21, fr=[(0, 0, 24, ACC0), (0, 1, 25, ACC0)], g=14, ph="C", first=True))
    units.append(dict(stage=21, fr=[(0, 2, 26, ACC0), (0, 3, 27, ACC0)], g=14, ph="C", first=False))
    for c in range(3):
        for p in range(4):
            units.append(dict(stage=22 + c, fr=[(0, p, 8 * c + p, ACC0), (1, p, 8 * c + 4 + p, ACC0)], g=15 + c, ph="C", first=False))
    NU = len(units)
    first_of_group = {}
    for u, d in enumerate(units):
        first_of_group.setdefault(d["g"], u)
    bar_at = {first_of_group[g] - 2: g for g in range(1, 18)}
    stages_of_group = {}
    for i in range(25):
        g = i // 2 if i < 14 else (7 + i - 14)
        stages_of_group.setdefault(g, []).append(i)
    grp = {i: g for g, l in stages_of_group.items() for i in l}
    issue_after = {}
    for i in range(9, 25):
        issue_after.setdefault(grp[i - 9] + 1, []).append(i)

    st = dict(wbase=0, xbase=0)
    rd_tag = {}

    def reads(u, half):
        d = units[u]
        base = (d["stage"] % 9) * SLOT
        reg = base & ~0xFFFF
        if half == 0 and reg != st["wbase"]:
            for p in range(4):
                a(f"v_add_u32 v{WA + p}, {(reg - st['wbase']) & 0xFFFFFFFF}, v{WA + p}")
            st["wbase"] = reg
        e, p, xi, acc = d["fr"][half]
        r = RING + 8 * (u % 4) + 4 * half
        off = base - reg + 8192 * e
        a(f"ds_read_b64_tr_b16 {q(r, 2)}, v{WA + p} offset:{off}")
        a(f"ds_read_b64_tr_b16 {q(r + 2, 2)}, v{WA + p} offset:{off + 256}")
        if d["ph"] == "A" and half == 0:
            xb = (d["xstage"] % 9) * SLOT
            xr = xb & ~0xFFFF
            if xr != st["xbase"]:
                for pp in range(4):
                    a(f"v_add_u32 v{XA + pp}, {(xr - st['xbase']) & 0xFFFFFFFF}, v{XA + pp}")
                st["xbase"] = xr
            a(f"ds_read_b128 {q(X + 4 * xi)}, v{XA + p} offset:{xb - xr}")
        rd_tag[(u, half)] = a.lg_tag()

    fill = []

    def add_fill(slot, items):
        for it in items:
            fill.append((slot, it))

    def run_fill(slot, n):
        k = 0
        while fill and fill[0][0] <= slot and k < n:
            it = fill.pop(0)[1]
            if callable(it):
                it()
            else:
                a(it)
            k += 1

    def stats_ops(xi):
        ops = []
        for j in range(4):
            r = X + 4 * xi + j
            t0, t1 = (vT0, vT1) if j % 2 == 0 else (vT2, vT3)
            ops += [f"v_lshlrev_b32 v{t0}, 16, v{r}", f"v_and_b32 v{t1}, s{sMask}, v{r}",
                    f"v_add_f32 v{vS0}, v{vS0}, v{t0}", f"v_add_f32 v{vS1}, v{vS1}, v{t1}",
                    f"v_fmac_f32 v{vQ0}, v{t0}, v{t0}", f"v_fmac_f32 v{vQ1}, v{t1}, v{t1}"]
        return ops

    def split_hi_lo(dst, src, t0, t1):
        return [f"v_cvt_pk_bf16_f32 v{t0}, v{src}, v{src}",
                f"v_lshlrev_b32 v{t1}, 16, v{t0}",
                f"v_sub_f32 v{t1}, v{src}, v{t1}",
                f"v_cvt_pk_bf16_f32 v{dst}, v{src}, v{t1}"]

    def epi_h(acc, soff):
        g, u_ = acc, acc + 16
        ops = []
        for blk in range(4):
            rs = range(4 * blk, 4 * blk + 4)
            ops += [f"v_mul_f32 v{g + r}, v{vC1}, v{g + r}" for r in rs]
            ops += [f"v_exp_f32 v{g + r}, v{g + r}" for r in rs]
            ops += [f"v_fma_f32 v{g + r}, v{g + r}, v{vSD}, v{vSD}" for r in rs]
            ops += [f"v_rcp_f32 v{g + r}, v{g + r}" for r in rs]
            ops += [f"v_mul_f32 v{g + r}, v{g + r}, v{u_ + r}" for r in rs]
            ops += [f"v_cvt_pk_bf16_f32 v{u_ + 2 * blk}, v{g + 4 * blk}, v{g + 4 * blk + 1}",
                    f"v_cvt_pk_bf16_f32 v{u_ + 2 * blk + 1}, v{g + 4 * blk + 2}, v{g + 4 * blk + 3}"]
            if blk % 2 == 1:
                ops.append(f"buffer_store_dwordx4 {q(u_ + 4 * (blk // 2))}, v{vL16}, s[{sWS}:{sWS + 3}], s{soff} offen offset:{1024 * (blk // 2)}{st_flags}")
        return ops

    def epi_qk(acc, soff, scale, pad2, pad3):
        ops = []
        for r in range(16):
            ops.append(f"v_mul_f32 v{acc + r}, v{scale}, v{acc + r}")
            if r % 2 == 1:
                ops.append(f"v_cvt_pk_bf16_f32 v{acc + r // 2}, v{acc + r - 1}, v{acc + r}")
            if r == 7:
                ops.append(f"buffer_store_dwordx4 {q(acc)}, v{vL16}, s[{sWS}:{sWS + 3}], s{soff} offen{st_flags}")
        ops += [f"s_mov_b64 exec, s[{sHi}:{sHi + 1}]", f"v_mov_b32 v{acc + 6}, {pad2}", f"v_mov_b32 v{acc + 7}, {pad3}", "s_mov_b64 exec, -1"]
        ops.append(f"buffer_store_dwordx4 {q(acc + 4)}, v{vL16}, s[{sWS}:{sWS + 3}], s{soff} offen offset:1024{st_flags}")
        return ops

    def cs_write(region, ntile):
        return [f"ds_write_b32 v{vMisc}, v{CS + 4 * t} offset:{region - STAT + 512 * t}" for t in range(ntile)]

    def aug(acc, csreg, swap):
        ops = [f"v_add_f32 v{csreg}, v{csreg}, v{csreg + 1}", f"v_add_f32 v{csreg + 2}, v{csreg + 2}, v{csreg + 3}",
               f"v_add_f32 v{csreg}, v{csreg}, v{csreg + 2}"]
        ops += split_hi_lo(AUGW, csreg, csreg + 1, csreg + 2)
        if swap:
            ops.append(f"v_mfma_f32_32x32x16_bf16 {q(acc, 16)}, {q(AUGX)}, {q(AUGW)}, {q(acc, 16)}")
        else:
            ops.append(f"v_mfma_f32_32x32x16_bf16 {q(acc, 16)}, {q(AUGW)}, {q(AUGX)}, {q(acc, 16)}")
        return ops

    def barrier(g):
        a.wait(vm=stage_tag[max(stages_of_group[g])] if g in stages_of_group else None, lg=a.lg_tag())
        a("s_barrier")
        for i in issue_after.get(g, []):
            issue(i)

    tags = {}

    def unit(u, variant):
        d = units[u]
        swap = (d["ph"] == "C" and variant == "V")
        for half in range(2):
            e, p, xi, acc = d["fr"][half]
            r = RING + 8 * (u % 4) + 4 * half
            a.wait(lg=rd_tag[(u, half)])
            cin = "0" if (d["first"] and (half == 0 or d["ph"] != "C")) else q(acc, 16)
            if swap:
                a(f"v_mfma_f32_32x32x16_bf16 {q(acc, 16)}, {q(X + 4 * xi)}, {q(r)}, {cin}")
            else:
                a(f"v_mfma_f32_32x32x16_bf16 {q(acc, 16)}, {q(r)}, {q(X + 4 * xi)}, {cin}")
            if half == 0 and u in bar_at:
                barrier(bar_at[u])
            if half == 0 and u in hooks:
                hooks[u]()
            if u + 2 < NU:
                reads(u + 2, half)
            if p == 0:
                cs = CS + (4 * half if d["ph"] != "C" else 0)
                cfirst = d["first"] and (half == 0 or d["ph"] != "C")
                a(f"v_mfma_f32_16x16x32_bf16 {q(cs)}, {q(SEL)}, {q(r)}, {'0' if cfirst else q(cs)}")
            run_fill(2 * u + half, rate(u))

    def rate(u):
        return 7 if u < 28 else 6

    for u in range(28):
        if u % 4 < 2:
            add_fill(2 * u + 1, stats_ops(u))

    hooks = {}

    def hook_T1():
        a(f"ds_read_b64_tr_b16 {q(ACC1, 2)}, v{vT}")
        a(f"ds_read_b64_tr_b16 {q(ACC1 + 2, 2)}, v{vT} offset:512")
        tags["T"] = a.lg_tag()

    def hook_T2():
        a.wait(lg=tags["T"])
        a(f"s_mov_b64 exec, s[{sTm}:{sTm + 1}]")
        a(f"v_mov_b32 v{ACC1 + 2}, 0")
        a(f"v_mov_b32 v{ACC1 + 3}, 0")
        a("s_mov_b64 exec, -1")
        a(f"buffer_store_dwordx4 {q(ACC1)}, v{vL16}, s[{sWS}:{sWS + 3}], s{sTo} offen{st_flags}")

    hooks[15] = hook_T1
    hooks[17] = hook_T2

    def hook_26():
        for p in range(4):
            a(f"v_add_u32 v{WA + p}, s{sB8}, v{WA + p}")
    hooks[26] = hook_26

    def hook_csa():
        for t in cs_write(CSA, 2):
            a(t)
    hooks[27] = hook_csa

    def hook_stat_w():
        run_fill(10 ** 9, 10 ** 9)
        a(f"""
        v_add_f32 v{vS0}, v{vS0}, v{vS1}
        v_add_f32 v{vS1}, v{vQ0}, v{vQ1}
        v_and_b32 v{vT0}, 31, v0
        v_lshlrev_b32 v{vT0}, 5, v{vT0}
        s_lshl_b32 s9, s{sTb}, 10
        s_add_u32 s9, s9, {STAT}
        v_add_u32 v{vT}, s9, v{vT0}
        v_lshrrev_b32 v{vT1}, 5, v0
        v_lshl_add_u32 v{vT0}, v{vT1}, 3, v{vT}
        s_lshl_b32 s9, s{sHg}, 4
        v_add_u32 v{vT0}, s9, v{vT0}
        ds_write_b64 v{vT0}, v[{vS0}:{vS1}]
        """)
    hooks[29] = hook_stat_w

    def hook_stat_r():
        a(f"""
        ds_read_b128 v[8:11], v{vT}
        ds_read_b128 v[12:15], v{vT} offset:16
        v_and_b32 v{vT}, -16, v{vMisc}
        ds_read_b128 v[2:5], v{vT} offset:{CSA - STAT}
        ds_read_b128 {q(XA)}, v{vT} offset:{CSA - STAT + 512}
        """)
        tags["stat"] = a.lg_tag()
        ops = [lambda: a.wait(lg=tags["stat"]),
               "v_add_f32 v8, v8, v10", "v_add_f32 v9, v9, v11", "v_add_f32 v12, v12, v14", "v_add_f32 v13, v13, v15",
               "v_add_f32 v8, v8, v12", "v_add_f32 v9, v9, v13",
               f"v_mul_f32 v8, {f32(-1.0 / 448)}, v8",
               f"v_mul_f32 v9, {f32(1.0 / 448)}, v9",
               "v_fma_f32 v9, -v8, v8, v9", "v_max_f32 v9, 0, v9", f"v_add_f32 v9, {f32(1e-5)}, v9",
               f"v_rsq_f32 v{vRS}, v9",
               f"v_cvt_pk_bf16_f32 v{AUGX}, v8, v8",
               f"v_mul_f32 v{vSD}, v9, v{vRS}",
               f"v_mul_f32 v{vC1}, {f32(-LOG2E)}, v{vRS}",
               f"v_lshlrev_b32 v10, 16, v{AUGX}", "v_sub_f32 v10, v8, v10",
               "v_and_b32 v11, 31, v0", f"s_lshl_b32 s9, s{sTb}, 7", f"s_add_u32 s9, s9, {RSTD}",
               "v_lshlrev_b32 v11, 2, v11", "v_add_u32 v11, s9, v11",
               lambda: a(f"""
               s_mov_b64 exec, s[{sHi}:{sHi + 1}]
               v_cvt_pk_bf16_f32 v{AUGX}, v10, v10
               s_mov_b64 exec, -1
               """),
               f"ds_write_b32 v11, v{vRS}"]
        ops += aug(ACC0, 2, False) + aug(ACC0 + 16, XA, False)
        ops += ["s_nop 0"] * 0
        add_fill(2 * 31, ops)
        add_fill(2 * 35 + 1, epi_h(ACC0, sHA))
    hooks[30] = hook_stat_r

    def hook_csb():
        for t in cs_write(STAT, 2):
            a(t)
    hooks[53] = hook_csb

    def hook_csb_r():
        for p in range(4):
            a(f"v_add_u32 v{WA + p}, s{sC8}, v{WA + p}")
        a(f"ds_read_b128 v[2:5], v{vT}")
        a(f"ds_read_b128 v[8:11], v{vT} offset:512")
        tags["csb"] = a.lg_tag()
    hooks[54] = hook_csb_r

    def hook_csc():
        for t in cs_write(CSA, 1):
            a(t)
    hooks[67] = hook_csc

    def hook_csc_r():
        a.wait(lg=a.lg_tag())
        a("s_barrier")
        a(f"ds_read_b128 v[12:15], v{vT} offset:{CSA - STAT}")
        tags["csc"] = a.lg_tag()
    hooks[68] = hook_csc_r

    a(f"""
    s_lshl_b32 s9, s{sHg}, 3
    s_cmp_ge_u32 s{sG}, 12
    s_cselect_b32 s{sB8}, s9, 0
    s_cselect_b32 s{sC8}, 0, s9
    """)
    barrier(0)
    for u in range(2):
        reads(u, 0)
        reads(u, 1)
    for u in range(56):
        unit(u, None)
    run_fill(10 ** 9, 10 ** 9)
    a(f"s_cmp_lt_u32 s{sG}, 8")
    a("s_cbranch_scc1 L_k1_V")
    a(f"s_cmp_ge_u32 s{sG}, 12")
    a("s_cbranch_scc1 L_k1_Q")
    saved = (a.vm, a.lg, dict(rd_tag), dict(st), dict(tags))
    for variant in ("K", "Q", "V"):
        a.vm, a.lg = saved[0], saved[1]
        rd_tag.clear(); rd_tag.update(saved[2])
        st.clear(); st.update(saved[3])
        tags.clear(); tags.update(saved[4])
        if variant != "K":
            a(f"L_k1_{variant}:")
        ops = [lambda: a.wait(lg=tags["csb"])] + aug(ACC1, 2, False) + aug(ACC1 + 16, 8, False)
        add_fill(2 * 56, ops)
        if variant == "Q":
            add_fill(2 * 58, [f"v_mul_f32 v2, s{sQs}, v{vRS}"] + epi_qk(ACC1, sPB0, 2, 0, 0) + epi_qk(ACC1 + 16, sPB1, 2, 0, 0))
        else:
            add_fill(2 * 58, epi_h(ACC1, sPB0))
        if variant == "V":
            def rd_rstd():
                a(f"""
                v_lshrrev_b32 v3, 5, v0
                v_lshlrev_b32 v3, 4, v3
                s_lshl_b32 s9, s{sTb}, 7
                s_add_u32 s9, s9, {RSTD}
                v_add_u32 v3, s9, v3
                """)
                for b in range(4):
                    a(f"ds_read_b128 {q(X + 96 + 4 * b)}, v3 offset:{32 * b}")
            hooks[62] = rd_rstd
        else:
            hooks.pop(62, None)
        for u in range(56, NU):
            unit(u, variant)
        run_fill(10 ** 9, 10 ** 9)
        a.wait(lg=tags["csc"])
        for t in aug(ACC0, 12, variant == "V"):
            a(t)
        if variant == "V":
            for r in range(16):
                a(f"v_mul_f32 v{ACC0 + r}, v{X + 96 + r}, v{ACC0 + r}")
                if r % 2 == 1:
                    a(f"v_cvt_pk_bf16_f32 v{ACC0 + r // 2}, v{ACC0 + r - 1}, v{ACC0 + r}")
            a(f"s_mov_b64 exec, s[{sV1}:{sV1 + 1}]")
            for r in range(8):
                a(f"v_mov_b32 v{ACC0 + r}, 0x3f803f80")
            a(f"s_mov_b64 exec, s[{sV0}:{sV0 + 1}]")
            for r in range(8):
                a(f"v_mov_b32 v{ACC0 + r}, 0")
            a("s_mov_b64 exec, -1")
            a(f"buffer_store_dwordx4 {q(ACC0)}, v{vL16}, s[{sWS}:{sWS + 3}], s{sPC} offen{st_flags}")
            a(f"buffer_store_dwordx4 {q(ACC0 + 4)}, v{vL16}, s[{sWS}:{sWS + 3}], s{sPC} offen offset:1024{st_flags}")
        else:
            for t in epi_qk(ACC0, sPC, vRS, "0x3f803f80", "0x00003f80"):
                a(t)
        a("s_endpgm")
    a("L_k1_exit:")
    a("s_endpgm")
    return a
```

```python
from asmlib import Asm
from layout import *
from k1 import f32, q, srd, LOG2E

OB = 0
MB = 65536
CNT = 67584
RB = 67840
ROWB = 272
LDS2 = RB + 4 * 64 * ROWB
NV2 = 256

vL16 = 1
QR = 16
OR_ = 48
KVB = 112
SB = 176
PB = 208
MR = 224
sWS, sKV = 36, 40
sHi = 44


def Qf(qt, s): return q(QR + 8 * qt + 4 * s)
def Of(qt): return q(OR_ + 16 * qt, 16)
def Kf(b, s): return q(KVB + 16 * b + 4 * s)
def Vf(b, s): return q(KVB + 16 * b + 8 + 4 * s)
def Sf(i): return q(SB + 16 * i, 16)
def Pf(i, s): return q(PB + 8 * i + 4 * s)


def k2(name, opts):
    stf = opts.get("st2", "")
    a = Asm()
    a(f"{name}:")
    a(f"""
    s_cmp_ge_u32 s2, 256
    s_cbranch_scc1 L_k2_exit
    s_load_dwordx2 s[32:33], s[0:1], 72
    v_lshrrev_b32 v1, 6, v0
    v_and_b32 v0, 63, v0
    s_and_b32 s4, s2, 7
    v_readfirstlane_b32 s3, v1
    s_lshr_b32 s5, s2, 3
    v_lshlrev_b32 v{vL16}, 4, v0
    v_mov_b32 v2, {CNT}
    v_mov_b32 v3, 0
    ds_write_b32 v2, v3
    s_mov_b32 s{sHi}, 0
    s_mov_b32 s{sHi + 1}, -1
    s_waitcnt lgkmcnt(0)
    """)
    srd(a, sWS, 32, WS_END)
    srd(a, sKV, 32, WS_END)
    a("s_barrier")
    a("s_cmp_ge_u32 s3, 4")
    a("s_cbranch_scc1 L_k2_gemm")
    a(f"""
    s_setprio 2
    s_lshl_b32 s6, s4, 1
    s_lshr_b32 s7, s5, 4
    s_add_u32 s6, s6, s7
    s_and_b32 s7, s5, 15
    s_lshl_b32 s8, s6, 17
    s_lshl_b32 s9, s7, 13
    s_add_u32 s8, s8, s9
    s_add_u32 s9, s8, 4096
    s_lshl_b32 s10, s6, 18
    s_lshl_b32 s11, s3, 16
    s_add_u32 s10, s10, s11
    s_add_u32 s10, s10, {KV}
    s_mov_b32 s12, s10
    s_mov_b32 s14, 0
    """)
    def ld_tile(b):
        for i in range(4):
            a(f"buffer_load_dwordx4 {q(KVB + 16 * b + 4 * i)}, v{vL16}, s[{sKV}:{sKV + 3}], s12 offen offset:{1024 * i}")
        a("s_add_u32 s12, s12, 4096")
    a(f"buffer_load_dwordx4 {Kf(0, 0)}, v{vL16}, s[{sKV}:{sKV + 3}], s12 offen")
    a(f"buffer_load_dwordx4 {Kf(0, 1)}, v{vL16}, s[{sKV}:{sKV + 3}], s12 offen offset:1024")
    for qt in range(4):
        for s in range(2):
            a(f"buffer_load_dwordx4 {Qf(qt, s)}, v{vL16}, s[{sWS}:{sWS + 3}], s{8 + qt // 2} offen offset:{(QF + 2048 * (qt % 2) + 1024 * s)}")
    tq = a.vm_tag()
    a(f"buffer_load_dwordx4 {Vf(0, 0)}, v{vL16}, s[{sKV}:{sKV + 3}], s12 offen offset:2048")
    a(f"buffer_load_dwordx4 {Vf(0, 1)}, v{vL16}, s[{sKV}:{sKV + 3}], s12 offen offset:3072")
    a("s_add_u32 s12, s12, 4096")
    for b in range(1, 3):
        ld_tile(b)
    for r in range(64):
        a(f"v_mov_b32 v{OR_ + r}, 0")
    a.wait(vm=tq)

    def smax(dst, sb, first):
        s = SB + 16 * sb
        if first:
            a(f"v_max3_f32 v{dst}, v{s}, v{s + 1}, v{s + 2}")
            rest = list(range(3, 16))
        else:
            rest = list(range(16))
        while len(rest) >= 2:
            a(f"v_max3_f32 v{dst}, v{dst}, v{s + rest[0]}, v{s + rest[1]}")
            rest = rest[2:]
        if rest:
            a(f"v_max_f32 v{dst}, v{dst}, v{s + rest[0]}")

    def tile_max(first):
        for qt in range(4):
            a(f"v_mfma_f32_32x32x16_bf16 {Sf(qt % 2)}, {Kf(0, 0)}, {Qf(qt, 0)}, 0")
            a(f"v_mfma_f32_32x32x16_bf16 {Sf(qt % 2)}, {Kf(0, 1)}, {Qf(qt, 1)}, {Sf(qt % 2)}")
            if qt >= 1:
                smax(MR + qt - 1, (qt - 1) % 2, first)
        smax(MR + 3, 1, first)

    tile_max(True)
    a("L_k2_main:")
    for qt in range(4):
        a(f"v_mov_b32 v{4 + qt}, v{MR + qt}")
    for qt in range(4):
        a(f"v_permlane32_swap_b32 v{4 + qt}, v{MR + qt}")
    for qt in range(4):
        a(f"v_max_f32 v{MR + qt}, v{MR + qt}, v{4 + qt}")
    a(f"s_mov_b64 exec, s[{sHi}:{sHi + 1}]")
    for qt in range(4):
        m = MR + qt
        d2, d3 = QR + 8 * qt + 6, QR + 8 * qt + 7
        a(f"""
        v_cvt_pk_bf16_f32 v4, -v{m}, -v{m}
        v_lshlrev_b32 v4, 16, v4
        v_sub_f32 v5, -v{m}, v4
        v_cvt_pk_bf16_f32 v{d2}, -v{m}, v5
        v_and_b32 v6, 0xffff0000, v{d2}
        v_sub_f32 v5, v5, v6
        v_cvt_pk_bf16_f32 v{d3}, v5, 0
        """)
    a("s_mov_b64 exec, -1")
    a(f"v_mfma_f32_32x32x16_bf16 {Sf(0)}, {Kf(0, 0)}, {Qf(0, 0)}, 0")
    a(f"v_mfma_f32_32x32x16_bf16 {Sf(0)}, {Kf(0, 1)}, {Qf(0, 1)}, {Sf(0)}")
    a("s_mov_b32 s13, 0")

    def step(t, pv=True):
        kt, qt = (t // 4) % 4, t % 4
        n = t + 1
        nk, nq = (n // 4) % 4, n % 4
        p = t - 1
        pk, pq = (p // 4) % 4, p % 4
        s = SB + 16 * (t % 2)
        pp = PB + 8 * (t % 2)
        ex = lambda r: a(f"v_exp_f32 v{s + r}, v{s + r}")
        cv = lambda r: a(f"v_cvt_pk_bf16_f32 v{pp + r // 2}, v{s + r}, v{s + r + 1}")
        if qt == 3:
            a("s_waitcnt vmcnt(8)")
        a(f"v_mfma_f32_32x32x16_bf16 {Sf(n % 2)}, {Kf(nk, 0)}, {Qf(nq, 0)}, 0")
        for r in range(4): ex(r)
        if pv:
            a(f"v_mfma_f32_32x32x16_bf16 {Of(pq)}, {Vf(pk, 0)}, {Pf(p % 2, 0)}, {Of(pq)}")
        for r in range(4, 8): ex(r)
        cv(0); cv(2)
        a(f"v_mfma_f32_32x32x16_bf16 {Sf(n % 2)}, {Kf(nk, 1)}, {Qf(nq, 1)}, {Sf(n % 2)}")
        for r in range(8, 12): ex(r)
        cv(4); cv(6)
        if pv:
            a(f"v_mfma_f32_32x32x16_bf16 {Of(pq)}, {Vf(pk, 1)}, {Pf(p % 2, 1)}, {Of(pq)}")
        if qt == 1:
            ld_tile((kt - 1) % 4)
            if t == 1:
                a("s_cmp_eq_u32 s13, 3")
                a(f"s_cselect_b32 s{sKV + 2}, 0, {WS_END}")
        for r in range(12, 16): ex(r)
        cv(8); cv(10); cv(12); cv(14)

    step(0, pv=False)
    a("s_waitcnt vmcnt(8)")
    a("L_k2_loop:")
    for t in range(1, 16):
        step(t)
    a("s_cmp_eq_u32 s13, 3")
    a("s_cbranch_scc1 L_k2_done")
    step(16)
    a("s_add_u32 s13, s13, 1")
    a("s_branch L_k2_loop")
    a("L_k2_done:")
    a(f"v_mfma_f32_32x32x16_bf16 {Of(3)}, {Vf(3, 0)}, {Pf(1, 0)}, {Of(3)}")
    a(f"v_mfma_f32_32x32x16_bf16 {Of(3)}, {Vf(3, 1)}, {Pf(1, 1)}, {Of(3)}")
    a(f"s_mov_b64 exec, s[{sHi}:{sHi + 1}]")
    for qt in range(4):
        a(f"v_cmp_nge_f32 vcc, 0x5d800000, v{OR_ + 16 * qt + 12}")
        a(f"s_mov_b64 s[{46 + 2 * qt}:{47 + 2 * qt}], vcc")
    a("s_mov_b64 exec, -1")
    a("""
    s_or_b64 s[46:47], s[46:47], s[48:49]
    s_or_b64 s[50:51], s[50:51], s[52:53]
    s_or_b64 s[46:47], s[46:47], s[50:51]
    s_cbranch_scc1 L_k2_slow
    L_k2_comb:
    """)
    a(f"""
    s_lshl_b32 s15, s3, 14
    v_add_u32 v2, s15, v{vL16}
    v_and_b32 v3, 31, v0
    v_lshlrev_b32 v3, 2, v3
    s_lshl_b32 s15, s3, 9
    v_add_u32 v4, s15, v3
    """)
    for qt in range(4):
        a(f"ds_write_b32 v4, v{MR + qt} offset:{(MB + 128 * qt) - 65536 + 65536 if False else 0}" if False else "")
    a(f"v_add_u32 v4, {MB}, v4")
    for qt in range(4):
        a(f"ds_write_b32 v4, v{MR + qt} offset:{128 * qt}")
    for qt in range(4):
        for b in range(4):
            a(f"ds_write_b128 v2, {q(OR_ + 16 * qt + 4 * b)} offset:{4096 * qt + 1024 * b}")
    a(f"""
    s_lshl_b32 s15, s3, 12
    v_add_u32 v2, s15, v{vL16}
    s_lshl_b32 s15, s3, 7
    s_add_u32 s15, s15, {MB}
    v_add_u32 v4, s15, v3
    s_waitcnt lgkmcnt(0)
    s_barrier
    """)
    for w in range(4):
        a(f"ds_read_b32 v{8 + w}, v4 offset:{512 * w}")
    tm = a.lg_tag()
    tg = []
    for w in range(4):
        for b in range(4):
            a(f"ds_read_b128 {q(OR_ + 16 * w + 4 * b)}, v2 offset:{16384 * w + 1024 * b}")
        tg.append(a.lg_tag())
    a.wait(lg=tm)
    a("v_max3_f32 v12, v8, v9, v10")
    a("v_max_f32 v12, v12, v11")
    for w in range(4):
        a(f"v_sub_f32 v{8 + w}, v{8 + w}, v12")
    for w in range(4):
        a(f"v_exp_f32 v{8 + w}, v{8 + w}")
    a.wait(lg=tg[0])
    for r in range(16):
        a(f"v_mul_f32 v{OR_ + r}, v8, v{OR_ + r}")
    for w in range(1, 4):
        a.wait(lg=tg[w])
        for r in range(16):
            a(f"v_fmac_f32 v{OR_ + r}, v{8 + w}, v{OR_ + 16 * w + r}")
    a(f"""
    v_mov_b32 v12, v{OR_ + 12}
    v_mov_b32 v13, v{OR_ + 12}
    v_permlane32_swap_b32 v12, v13
    v_rcp_f32 v13, v13
    s_lshl_b32 s15, s7, 2
    s_add_u32 s15, s15, s3
    s_lshl_b32 s15, s15, 15
    s_lshl_b32 s16, s6, 11
    s_add_u32 s15, s15, s16
    s_add_u32 s15, s15, {OF}
    """)
    for r in range(16):
        a(f"v_mul_f32 v{OR_ + r}, v13, v{OR_ + r}")
        if r % 2 == 1:
            a(f"v_cvt_pk_bf16_f32 v{OR_ + 16 + r // 2}, v{OR_ + r - 1}, v{OR_ + r}")
    a(f"buffer_store_dwordx4 {q(OR_ + 16)}, v{vL16}, s[{sWS}:{sWS + 3}], s15 offen{stf}")
    a(f"buffer_store_dwordx4 {q(OR_ + 20)}, v{vL16}, s[{sWS}:{sWS + 3}], s15 offen offset:1024{stf}")
    a("s_endpgm")
    a(f"""
    L_k2_slow:
    s_cmp_eq_u32 s14, 1
    s_cbranch_scc1 L_k2_comb
    s_mov_b32 s14, 1
    s_mov_b32 s{sKV + 2}, {WS_END}
    s_mov_b64 exec, s[{sHi}:{sHi + 1}]
    """)
    for qt in range(4):
        a(f"v_mov_b32 v{QR + 8 * qt + 6}, 0")
        a(f"v_mov_b32 v{QR + 8 * qt + 7}, 0")
    a("s_mov_b64 exec, -1")
    a("s_add_u32 s12, s10, 65536")
    a("L_k2_slow_loop:")
    a("s_sub_u32 s12, s12, 4096")
    a(f"buffer_load_dwordx4 {Kf(0, 0)}, v{vL16}, s[{sKV}:{sKV + 3}], s12 offen")
    a(f"buffer_load_dwordx4 {Kf(0, 1)}, v{vL16}, s[{sKV}:{sKV + 3}], s12 offen offset:1024")
    a("s_waitcnt vmcnt(0)")
    tile_max(False)
    a("s_cmp_lg_u32 s12, s10")
    a("s_cbranch_scc1 L_k2_slow_loop")
    for b in range(3):
        ld_tile(b)
    for r in range(64):
        a(f"v_mov_b32 v{OR_ + r}, 0")
    a("s_waitcnt vmcnt(0)")
    a("s_branch L_k2_main")

    ACC = 16
    LB = 80
    NB = 10
    a(f"""
    L_k2_gemm:
    s_cmp_ge_u32 s5, 28
    s_cbranch_scc1 L_k2_exit
    s_sub_u32 s3, s3, 4
    s_mul_i32 s6, s5, 9363
    s_lshr_b32 s6, s6, 16
    s_mul_i32 s7, s6, 7
    s_sub_u32 s7, s5, s7
    s_lshl_b32 s8, s4, 3
    s_lshl_b32 s9, s6, 1
    s_add_u32 s8, s8, s9
    s_mul_i32 s10, s3, {28 * 1024}
    s_mul_i32 s11, s8, {112 * 1024}
    s_add_u32 s11, s11, s10
    s_add_u32 s16, s11, {HF}
    s_add_u32 s17, s16, {112 * 1024}
    s_mul_i32 s11, s7, {2 * 112 * 1024}
    s_add_u32 s11, s11, s10
    s_add_u32 s18, s11, {WDF}
    s_add_u32 s19, s18, {112 * 1024}
    """)
    ltag = {}

    def gload(ks):
        b = LB + 16 * (ks % NB)
        for i in range(4):
            a(f"buffer_load_dwordx4 {q(b + 4 * i)}, v{vL16}, s[{sWS}:{sWS + 3}], s{16 + i} offen offset:{1024 * (ks % 4)}")
        if ks % 4 == 3:
            for i in range(4):
                a(f"s_add_u32 s{16 + i}, s{16 + i}, 4096")
        ltag[ks] = a.vm_tag()
    a.vm = 0
    for ks in range(NB):
        gload(ks)
    for ks in range(28):
        b = LB + 16 * (ks % NB)
        a.wait(vm=ltag[ks])
        for ct in range(2):
            for tt in range(2):
                acc = q(ACC + 16 * (2 * ct + tt), 16)
                a(f"v_mfma_f32_32x32x16_bf16 {acc}, {q(b + 8 + 4 * ct)}, {q(b + 4 * tt)}, {'0' if ks == 0 else acc}")
        if ks >= 1 and ks - 1 + NB < 28:
            gload(ks - 1 + NB)
    a(f"""
    v_and_b32 v2, 31, v0
    v_mul_u32_u24 v2, {ROWB}, v2
    v_lshrrev_b32 v3, 5, v0
    v_lshl_add_u32 v2, v3, 4, v2
    s_mul_i32 s10, s3, {64 * ROWB}
    s_add_u32 s10, s10, {RB}
    v_add_u32 v2, s10, v2
    """)
    for ct in range(2):
        for tt in range(2):
            for blk in range(4):
                a(f"ds_write_b128 v2, {q(ACC + 16 * (2 * ct + tt) + 4 * blk)} offset:{32 * ROWB * tt + 128 * ct + 32 * blk}")
    a(f"""
    v_mov_b32 v4, {CNT}
    v_mov_b32 v5, 1
    v_lshrrev_b32 v2, 2, v0
    v_and_b32 v3, 3, v0
    s_lshl_b32 s10, s3, 4
    v_add_u32 v2, s10, v2
    v_mul_u32_u24 v6, {ROWB}, v2
    v_lshl_add_u32 v6, v3, 6, v6
    v_add_u32 v6, {RB}, v6
    v_mul_u32_u24 v7, 896, v2
    v_lshl_add_u32 v7, v3, 5, v7
    s_mul_i32 s10, s8, {32 * 896}
    s_lshl_b32 s11, s7, 7
    s_add_u32 s10, s10, s11
    s_add_u32 s10, s10, {GG}
    s_waitcnt lgkmcnt(0)
    s_mov_b64 exec, 1
    ds_add_u32 v4, v5
    s_mov_b64 exec, -1
    L_k2_poll:
    ds_read_b32 v5, v4
    s_waitcnt lgkmcnt(0)
    v_readfirstlane_b32 s11, v5
    s_cmp_ge_u32 s11, 4
    s_cbranch_scc1 L_k2_red
    s_sleep 2
    s_branch L_k2_poll
    L_k2_red:
    """)
    a.lg = 0
    tg = []
    for w in range(4):
        for i in range(4):
            a(f"ds_read_b128 {q(ACC + 16 * w + 4 * i)}, v6 offset:{64 * ROWB * w + 16 * i}")
        tg.append(a.lg_tag())
    for w in range(1, 4):
        a.wait(lg=tg[w])
        for r in range(16):
            a(f"v_add_f32 v{ACC + r}, v{ACC + r}, v{ACC + 16 * w + r}")
    T = ACC + 16
    for r in range(16):
        a(f"v_mul_f32 v{T + r}, {f32(-LOG2E)}, v{ACC + r}")
    for r in range(16):
        a(f"v_exp_f32 v{T + r}, v{T + r}")
    for r in range(16):
        a(f"v_add_f32 v{T + r}, 1.0, v{T + r}")
    for r in range(16):
        a(f"v_rcp_f32 v{T + r}, v{T + r}")
    for r in range(16):
        a(f"v_mul_f32 v{T + r}, v{T + r}, v{ACC + r}")
    for r in range(8):
        a(f"v_cvt_pk_bf16_f32 v{ACC + r}, v{T + 2 * r}, v{T + 2 * r + 1}")
    a(f"buffer_store_dwordx4 {q(ACC)}, v7, s[{sWS}:{sWS + 3}], s10 offen{stf}")
    a(f"buffer_store_dwordx4 {q(ACC + 4)}, v7, s[{sWS}:{sWS + 3}], s10 offen offset:16{stf}")
    a("L_k2_exit:")
    a("s_endpgm")
    return a
```

```python
from asmlib import Asm
from layout import *
from k1 import f32, q, srd

ROWB = 272
LDS3 = 4 * 64 * ROWB
NV3 = 256
GRID3, BLOCK3 = 224, 256
sWS, sX, sO = 36, 40, 44


def k3(name, opts):
    a = Asm()
    ACC, LB, XR, GR = 16, 80, 208, 216
    a(f"{name}:")
    a(f"""
    s_cmp_ge_u32 s2, 224
    s_cbranch_scc1 L_k3_exit
    s_load_dwordx2 s[32:33], s[0:1], 72
    s_load_dwordx2 s[30:31], s[0:1], 56
    s_load_dwordx2 s[28:29], s[0:1], 0
    v_lshrrev_b32 v1, 6, v0
    v_and_b32 v0, 63, v0
    s_and_b32 s4, s2, 7
    v_readfirstlane_b32 s3, v1
    s_lshr_b32 s5, s2, 3
    v_lshlrev_b32 v1, 4, v0
    s_mul_i32 s6, s5, 9363
    s_lshr_b32 s6, s6, 16
    s_mul_i32 s7, s6, 7
    s_sub_u32 s7, s5, s7
    s_lshl_b32 s8, s4, 3
    s_lshl_b32 s9, s6, 1
    s_add_u32 s8, s8, s9
    s_lshl_b32 s10, s3, 13
    s_lshl_b32 s11, s8, 15
    s_add_u32 s11, s11, s10
    s_add_u32 s16, s11, {OF}
    s_add_u32 s17, s16, {32 * 1024}
    s_lshl_b32 s11, s7, 16
    s_add_u32 s11, s11, s10
    s_add_u32 s18, s11, {WOF}
    s_add_u32 s19, s18, {32 * 1024}
    s_add_u32 s20, s16, 4096
    s_add_u32 s21, s17, 4096
    s_add_u32 s22, s18, 4096
    s_add_u32 s23, s19, 4096
    v_lshrrev_b32 v2, 2, v0
    v_and_b32 v3, 3, v0
    s_lshl_b32 s10, s3, 4
    v_add_u32 v2, s10, v2
    v_mul_u32_u24 v6, {ROWB}, v2
    v_lshl_add_u32 v6, v3, 6, v6
    v_mul_u32_u24 v7, 896, v2
    v_lshl_add_u32 v7, v3, 5, v7
    s_mul_i32 s10, s8, {32 * 896}
    s_lshl_b32 s11, s7, 7
    s_add_u32 s10, s10, s11
    s_add_u32 s11, s10, {GG}
    s_waitcnt lgkmcnt(0)
    """)
    srd(a, sWS, 32, WS_END)
    srd(a, sX, 28, 2048 * 896)
    srd(a, sO, 30, 2048 * 896)
    ltag = {}
    for ks in range(8):
        b = LB + 16 * ks
        for i in range(4):
            a(f"buffer_load_dwordx4 {q(b + 4 * i)}, v1, s[{sWS}:{sWS + 3}], s{16 + 4 * (ks // 4) + i} offen offset:{1024 * (ks % 4)}")
        ltag[ks] = a.vm_tag()
    a(f"buffer_load_dwordx4 {q(XR)}, v7, s[{sX}:{sX + 3}], s10 offen")
    a(f"buffer_load_dwordx4 {q(XR + 4)}, v7, s[{sX}:{sX + 3}], s10 offen offset:16")
    a(f"buffer_load_dwordx4 {q(GR)}, v7, s[{sWS}:{sWS + 3}], s11 offen")
    a(f"buffer_load_dwordx4 {q(GR + 4)}, v7, s[{sWS}:{sWS + 3}], s11 offen offset:16")
    a(f"""
    v_and_b32 v2, 31, v0
    v_mul_u32_u24 v2, {ROWB}, v2
    v_lshrrev_b32 v3, 5, v0
    v_lshl_add_u32 v2, v3, 4, v2
    s_mul_i32 s12, s3, {64 * ROWB}
    v_add_u32 v2, s12, v2
    s_mov_b32 s13, 0xffff0000
    """)
    for ks in range(8):
        b = LB + 16 * ks
        a.wait(vm=ltag[ks])
        for ct in range(2):
            for tt in range(2):
                acc = q(ACC + 16 * (2 * ct + tt), 16)
                a(f"v_mfma_f32_32x32x16_bf16 {acc}, {q(b + 8 + 4 * ct)}, {q(b + 4 * tt)}, {'0' if ks == 0 else acc}")
    for ct in range(2):
        for tt in range(2):
            for blk in range(4):
                a(f"ds_write_b128 v2, {q(ACC + 16 * (2 * ct + tt) + 4 * blk)} offset:{32 * ROWB * tt + 128 * ct + 32 * blk}")
    a("s_waitcnt vmcnt(0) lgkmcnt(0)")
    a("s_barrier")
    tg = []
    for w in range(4):
        for i in range(4):
            a(f"ds_read_b128 {q(ACC + 16 * w + 4 * i)}, v6 offset:{64 * ROWB * w + 16 * i}")
        tg.append(a.lg_tag())
    XU, GU = LB, LB + 16
    for d in range(8):
        a(f"v_lshlrev_b32 v{XU + 2 * d}, 16, v{XR + d}")
        a(f"v_and_b32 v{XU + 2 * d + 1}, s13, v{XR + d}")
        a(f"v_lshlrev_b32 v{GU + 2 * d}, 16, v{GR + d}")
        a(f"v_and_b32 v{GU + 2 * d + 1}, s13, v{GR + d}")
    for w in range(1, 4):
        a.wait(lg=tg[w])
        for r in range(16):
            a(f"v_add_f32 v{ACC + r}, v{ACC + r}, v{ACC + 16 * w + r}")
    for r in range(16):
        a(f"v_fmac_f32 v{XU + r}, v{ACC + r}, v{GU + r}")
    for r in range(8):
        a(f"v_cvt_pk_bf16_f32 v{ACC + r}, v{XU + 2 * r}, v{XU + 2 * r + 1}")
    a(f"buffer_store_dwordx4 {q(ACC)}, v7, s[{sO}:{sO + 3}], s10 offen")
    a(f"buffer_store_dwordx4 {q(ACC + 4)}, v7, s[{sO}:{sO + 3}], s10 offen offset:16")
    a("L_k3_exit:")
    a("s_endpgm")
    return a
```

```python
import sys, os
sys.path.insert(0, os.path.dirname(os.path.abspath(__file__)))
from asmlib import Asm
from layout import *
import k1 as K1

REF = "recurrent_scan__mha_block__glu_gated_glu__prompt.s.ref"

def build(kernels):
    head = []
    for line in open(REF):
        if line.startswith("; @launch") or line.startswith("; Override") or line.startswith("; grid="):
            continue
        if line.startswith(";"):
            head.append(line.rstrip("\n"))
        else:
            break
    out = head[:]
    for (label, a, grid, block, lds, nv) in kernels:
        out.append(f"; @launch kernel={label} grid=({grid},1,1) block=({block},1,1) lds={lds}")
    out.append('.amdgcn_target "amdgcn-amd-amdhsa--gfx950"')
    out.append(".text")
    for (label, a, grid, block, lds, nv) in kernels:
        out += [f".globl {label}", ".p2align 8", f".type {label},@function", a.text()]
    out.append('.section .rodata,"a"')
    for (label, a, grid, block, lds, nv) in kernels:
        out += [".p2align 6", f".amdhsa_kernel {label}",
                f"  .amdhsa_next_free_vgpr {nv}", "  .amdhsa_next_free_sgpr 102", f"  .amdhsa_accum_offset {min(256, (nv + 3) // 4 * 4)}",
                "  .amdhsa_group_segment_fixed_size 0", "  .amdhsa_kernarg_size 80", "  .amdhsa_user_sgpr_count 2",
                "  .amdhsa_user_sgpr_kernarg_segment_ptr 1", "  .amdhsa_system_sgpr_workgroup_id_x 1", ".end_amdhsa_kernel"]
    return "\n".join(out) + "\n"

if __name__ == "__main__":
    opts = dict(o.split("=", 1) for o in sys.argv[2:])
    ks = [("proj_kernel", K1.k1("proj_kernel", opts.get("st1", "")), 256, 512, K1.LDS1, 256)]
    try:
        import k2 as K2
        ks.append(("attn_kernel", K2.k2("attn_kernel", opts), 256, 512, K2.LDS2, K2.NV2))
        import k3 as K3
        ks.append(("outp_kernel", K3.k3("outp_kernel", opts), K3.GRID3, K3.BLOCK3, K3.LDS3, K3.NV3))
    except ImportError as e:
        print("missing:", e)
    open(sys.argv[1], "w").write(build(ks))
```
